```python
import torch

def _softmax(x, axis=-1):
    return torch.softmax(x, dim=axis)
def _gelu(x):
    return torch.nn.functional.gelu(x, approximate="tanh")
def _silu(x):
    return torch.nn.functional.silu(x)
def _sigmoid(x):
    return torch.sigmoid(x)
def _layernorm(x, axis=-1, eps=1e-5):
    m = x.mean(dim=axis, keepdim=True)
    v = x.var(dim=axis, keepdim=True, unbiased=False)
    return (x - m) / torch.sqrt(v + eps)
def _scatter_add(tgt, idx, src, axis=0):
    return tgt.clone().index_add_(axis, idx, src)
def _segment_sum(src, seg, n):
    out = torch.zeros((n,) + src.shape[1:], dtype=src.dtype)
    return out.index_add_(0, seg, src)
def _pad(x, pw):
    flat = tuple(v for pair in reversed(pw) for v in pair)
    return torch.nn.functional.pad(x, flat)

kernel_name = 'standalone__weight_only_int_gptq__prompt'

def setup_inputs():

    _w = (lambda a: (lambda t: t.to(torch.bfloat16) if t.is_floating_point() else t)(torch.as_tensor(a)))
    B, S, D, F = 1, 2048, 576, 4608
    bits = max(2, min(4, 3))
    pf = 32 // bits
    G = -1 if -1 > 0 else D
    G = max(pf, (G // pf) * pf)
    D = max(G, (D // G) * G)
    ng = D // G
    qmax = 1 << bits
    qw = torch.randint(0, qmax, (D, F)).to(torch.int64)
    packed = torch.zeros((D // pf, F), dtype=torch.int64)
    for i in range(pf):
        packed |= (qw[i::pf] << (i * bits))
    packed = packed.to(torch.int32)
    return {
        "x": _w((lambda *s: torch.randn(*s, dtype=torch.bfloat16) * 0.05)(B, S, D)),
        "qw_packed": _w(packed),
        "scales": _w(torch.abs((lambda *s: torch.randn(*s, dtype=torch.bfloat16) * 0.05)(ng, F)).to(float) * 0.1 + 0.01),
        "zeros": _w(torch.randint(0, qmax, (ng, F)).to(float)),
        "bits": _w((lambda _x: torch.as_tensor(_x, dtype=torch.int32))(bits)),
    }

def reference(x, qw_packed, scales, zeros, bits):
    b = int(bits)
    pf = 32 // b
    mask = (1 << b) - 1
    P, F = qw_packed.shape
    D = P * pf
    ng = scales.shape[0]
    G = D // ng
    shifts = (lambda x, dt: x.to(dt))(torch.arange(pf) * b, qw_packed.dtype)
    qw = ((qw_packed[:, None, :] >> shifts[None, :, None]) & mask).reshape(D, F)
    s = (lambda x, n, axis: torch.repeat_interleave(x, n, dim=axis))(scales, G, axis=0)
    z = (lambda x, n, axis: torch.repeat_interleave(x, n, dim=axis))(zeros, G, axis=0)
    w = ((lambda x, dt: x.to(dt))(qw, x.dtype) - z) * s
    return torch.einsum("bsd,df->bsf", x, w)
```

```python
import sys

M, K, N = 2048, 570, 4608
XROW = 1140
QROW = N * 4
OROW = N * 2
NSTAGE = 9
STAGE_B = 16384
LDS_BYTES = NSTAGE * STAGE_B

class Alloc:
    def __init__(self, start): self.n = start
    def get(self, cnt=1, align=1):
        self.n = (self.n + align - 1) // align * align
        r = self.n; self.n += cnt; return r

va = Alloc(1)
vLane = va.get(); vL31 = va.get(); vH = va.get()
vD = [va.get(), va.get()]
vW = va.get(); vW8 = va.get(); vWt = va.get(); vWt8 = va.get()
vO = va.get(); vHsh = va.get(); vHm = va.get()
vRt = va.get(); vRt8 = va.get()
R = [va.get() for _ in range(8)]
R8 = [va.get() for _ in range(8)]
LUT = [[va.get() for _ in range(4)] for _ in range(2)]
TMP = [va.get() for _ in range(12)]
WREG = [[va.get() for _ in range(29)] for _ in range(2)]
XF = [[va.get(4, 4) for _ in range(5)] for _ in range(2)]
WF = [[va.get(4, 4) for _ in range(2)] for _ in range(2)]
ACC = [va.get(16, 4) for _ in range(5)]
NVGPR = va.n

sX, sQ, sS, sZ, sOut = 4, 8, 12, 16, 20
sWave, sMt, sNt, sM0b = 24, 25, 26, 27
sSel0, sSel1 = 28, 29
sT0, sT1, sT2, sT3 = 30, 31, 32, 33
sK = 36

out = []
def e(s): out.append("    " + s)
def lab(s): out.append(s + ":")

class VM:
    def __init__(self): self.q = []; self.done = 0
    def issue(self, tag): self.q.append(tag)
    def outstanding(self): return len(self.q) - self.done
    def wait(self, tag):
        idx = max(i for i, t in enumerate(self.q) if t == tag)
        if idx < self.done: return
        n = len(self.q) - 1 - idx
        e(f"s_waitcnt vmcnt({n})")
        self.done = idx + 1

KS = []
for P in range(7):
    for t in range(5):
        KS.append((P, t, 10 * P + t, 10 * P + 5 + t))
KS.append((7, 0, 70, 71))
NKS = len(KS)
def stage_needed(ks):
    return max(KS[ks][2], KS[ks][3]) // 8

def gen_lut(cb, vz, vs):
    t = TMP
    e(f"v_lshlrev_b32 v{vz}, 16, v{vz}")
    e(f"v_lshlrev_b32 v{vs}, 16, v{vs}")
    lit = ["0", "1.0", "2.0", "0x40400000", "4.0", "0x40a00000", "0x40c00000", "0x40e00000"]
    W = [t[8], t[9], t[10], t[11]]
    for p in range(4):
        e(f"v_sub_f32 v{t[0]}, {lit[2*p]}, v{vz}")
        e(f"v_sub_f32 v{t[1]}, {lit[2*p+1]}, v{vz}")
        e(f"v_cvt_pk_bf16_f32 v{t[2]}, v{t[0]}, v{t[1]}")
        e(f"v_lshlrev_b32 v{t[3]}, 16, v{t[2]}")
        e(f"v_and_b32 v{t[4]}, 0xffff0000, v{t[2]}")
        e(f"v_mul_f32 v{t[3]}, v{t[3]}, v{vs}")
        e(f"v_mul_f32 v{t[4]}, v{t[4]}, v{vs}")
        e(f"v_cvt_pk_bf16_f32 v{W[p]}, v{t[3]}, v{t[4]}")
    e(f"s_mov_b32 s{sT0}, 0x06040200")
    e(f"s_mov_b32 s{sT1}, 0x07050301")
    L = LUT[cb]
    e(f"v_perm_b32 v{L[0]}, v{W[1]}, v{W[0]}, s{sT0}")
    e(f"v_perm_b32 v{L[1]}, v{W[3]}, v{W[2]}, s{sT0}")
    e(f"v_perm_b32 v{L[2]}, v{W[1]}, v{W[0]}, s{sT1}")
    e(f"v_perm_b32 v{L[3]}, v{W[3]}, v{W[2]}, s{sT1}")

def dequant(cb, ks, buf):
    P, t, _, _ = KS[ks]
    L = LUT[cb]; dst = WF[buf][cb]; T = TMP[6 * cb: 6 * cb + 6]
    ins = []
    if P < 7:
        words = [WREG[cb][4 * P + i] for i in range(4)]
        pairs = [4 * t + j for j in range(4)]
        pw = [(words[p // 5], 6 * (p % 5)) for p in pairs]
    else:
        wt = T[5]
        ins.append(f"v_lshrrev_b32 v{wt}, v{vHsh}, v{WREG[cb][28]}")
        pw = [(wt, 6 * j) for j in range(4)]
    for h in range(2):
        (wa, oa), (wb, ob) = pw[2 * h], pw[2 * h + 1]
        ins.append(f"v_bfe_u32 v{T[0]}, v{wa}, {oa}, 6")
        ins.append(f"v_bfe_u32 v{T[1]}, v{wb}, {ob}, 6")
        ins.append(f"v_lshl_or_b32 v{T[0]}, v{T[1]}, 16, v{T[0]}")
        ins.append(f"v_lshl_or_b32 v{T[1]}, v{T[0]}, 5, v{T[0]}")
        ins.append(f"v_and_b32 v{T[2]}, 0x07070707, v{T[1]}")
        ins.append(f"v_perm_b32 v{T[3]}, v{L[1]}, v{L[0]}, v{T[2]}")
        ins.append(f"v_perm_b32 v{T[4]}, v{L[3]}, v{L[2]}, v{T[2]}")
        ins.append(f"v_perm_b32 v{dst + 2*h}, v{T[4]}, v{T[3]}, s{sSel0}")
        ins.append(f"v_perm_b32 v{dst + 2*h + 1}, v{T[4]}, v{T[3]}, s{sSel1}")
    if P == 7:
        for d in (1, 2, 3):
            ins.append(f"v_and_b32 v{dst + d}, v{vHm}, v{dst + d}")
    return ins

def wave_body(awave):
    tag = "A" if awave else "B"
    ncb = 2 if awave else 1
    nx = 5 if awave else 4
    nblk = 5 if awave else 4
    vm = VM()
    ops = []
    for P in range(8):
        need = 5 * P - 1
        nw = 4 if P < 7 else 1
        for cb in range(ncb):
            for i in range(nw):
                ops.append((need, len(ops), ("w", cb, P, i)))
    first_need = {}
    for ks in range(NKS):
        s = stage_needed(ks)
        for ss in range(s + 1):
            first_need.setdefault(ss, ks - 1)
    for s in range(NSTAGE):
        for j in range(2):
            ops.append((first_need[s] - 0.5, len(ops), ("d", s, j)))
    ops.sort()
    pending = [o[2] for o in ops]
    def issue_one(op):
        if op[0] == "w":
            _, cb, P, i = op
            if P < 7:
                row = 8 * P + i; vo = vW8 if cb else vW; dst = WREG[cb][4 * P + i]
            else:
                row = 56; vo = vWt8 if cb else vWt; dst = WREG[cb][28]
            e(f"s_mov_b32 s{sT2}, {row * QROW}")
            e(f"buffer_load_dword v{dst}, v{vo}, s[{sQ}:{sQ+3}], s{sT2} offen")
        else:
            _, s, j = op
            e(f"s_add_u32 m0, s{sM0b}, {s * STAGE_B + j * 1024}")
            e(f"s_mov_b32 s{sT3}, {128 * s}")
            e(f"buffer_load_dwordx4 v{vD[j]}, s[{sX}:{sX+3}], s{sT3} offen lds")
        vm.issue(op)
    def topup(limit):
        while pending and vm.outstanding() < limit:
            issue_one(pending.pop(0))

    zs = [(TMP[6], TMP[7]), (WF[1][0], WF[1][1])]
    for cb in range(ncb):
        vo = vWt8 if cb else vWt
        e(f"v_lshrrev_b32 v{TMP[0]}, 1, v{vo}")
        e(f"buffer_load_ushort v{zs[cb][0]}, v{TMP[0]}, s[{sZ}:{sZ+3}], 0 offen"); vm.issue(("z", cb))
        e(f"buffer_load_ushort v{zs[cb][1]}, v{TMP[0]}, s[{sS}:{sS+3}], 0 offen"); vm.issue(("s", cb))
    topup(40)
    for cb in range(ncb):
        vm.wait(("s", cb))
        gen_lut(cb, zs[cb][0], zs[cb][1])

    cur_stage = [-1]
    def barrier_for(ks):
        s = stage_needed(ks)
        if s > cur_stage[0]:
            while any(p[0] == "d" and p[1] <= s for p in pending):
                issue_one(pending.pop(0))
            vm.wait(("d", s, 1))
            e("s_barrier")
            cur_stage[0] = s
    rbase = [0]
    def xreads(ks, buf):
        P, t, gc0, gc1 = KS[ks]
        if P == 7:
            for r in range(4):
                e(f"ds_read_b128 v[{XF[buf][r]}:{XF[buf][r]+3}], v{vRt} offset:{r*4096}")
            if awave:
                e(f"ds_read_b128 v[{XF[buf][4]}:{XF[buf][4]+3}], v{vRt8}")
            return
        c0 = gc0 & 7; s0 = gc0 >> 3
        while s0 - rbase[0] > 3:
            for c in range(8):
                e(f"v_add_u32 v{R[c]}, 0x10000, v{R[c]}")
                if awave: e(f"v_add_u32 v{R8[c]}, 0x10000, v{R8[c]}")
            rbase[0] += 4
        off = (s0 - rbase[0]) * STAGE_B
        for r in range(4):
            e(f"ds_read_b128 v[{XF[buf][r]}:{XF[buf][r]+3}], v{R[c0]} offset:{off + r*4096}")
        if awave:
            e(f"ds_read_b128 v[{XF[buf][4]}:{XF[buf][4]+3}], v{R8[c0]} offset:{off}")
    def need_words(ks):
        P = KS[ks][0]
        nw = 4 if P < 7 else 1
        for cb in range(ncb):
            op = ("w", cb, P, nw - 1)
            while op in pending:
                issue_one(pending.pop(0))
        for cb in range(ncb):
            vm.wait(("w", cb, P, nw - 1))

    need_words(0)
    for cb in range(ncb):
        for i in dequant(cb, 0, 0): e(i)
    barrier_for(0)
    xreads(0, 0)
    topup(56)
    for ks in range(NKS):
        buf = ks & 1
        nxt = ks + 1 < NKS
        V = []
        if nxt:
            barrier_for(ks + 1)
            xreads(ks + 1, buf ^ 1)
            e(f"s_waitcnt lgkmcnt({nx})")
            if KS[ks + 1][1] == 0: need_words(ks + 1)
            for cb in range(ncb): V += dequant(cb, ks + 1, buf ^ 1)
        else:
            e("s_waitcnt lgkmcnt(0)")
        topup(56)
        mf = []
        for b in range(nblk):
            cb = 1 if b == 4 else 0
            x = XF[buf][b]; w = WF[buf][cb]; a = ACC[b]
            c = "0" if ks == 0 else f"v[{a}:{a+15}]"
            mf.append(f"v_mfma_f32_32x32x16_bf16 v[{a}:{a+15}], v[{w}:{w+3}], v[{x}:{x+3}], {c}")
        per = -(-len(V) // len(mf)) if V else 0
        for m in mf:
            e(m)
            for i in V[:per]: e(i)
            V = V[per:]
    e("s_nop 15"); e("s_nop 7")
    sets = [XF[0][0], XF[0][2], XF[1][0], XF[1][2]]
    for b in range(nblk):
        a = ACC[b]; T = sets[b % 4]
        for g in range(4):
            e(f"v_cvt_pk_bf16_f32 v{T+2*g}, v{a+4*g}, v{a+4*g+1}")
            e(f"v_cvt_pk_bf16_f32 v{T+2*g+1}, v{a+4*g+2}, v{a+4*g+3}")
        for gp in range(2):
            e(f"v_permlane32_swap_b32 v{T+4*gp}, v{T+4*gp+2}")
            e(f"v_permlane32_swap_b32 v{T+4*gp+1}, v{T+4*gp+3}")
        if b == 4:
            e(f"s_mul_i32 s{sT3}, s{sWave}, {32*OROW - 64}")
            e(f"s_add_u32 s{sT3}, s{sT3}, {8*64}")
            so = sT3
        else:
            e(f"s_mov_b32 s{sT2}, {b*32*OROW}")
            so = sT2
        for gp in range(2):
            e(f"buffer_store_dwordx4 v[{T+4*gp}:{T+4*gp+3}], v{vO}, s[{sOut}:{sOut+3}], s{so} offen offset:{32*gp}")
    e("s_endpgm")

hdr = open("standalone__weight_only_int_gptq__prompt.s.ref").read().split("; @launch")[0]
print(hdr.rstrip())
print(f"; @launch grid=(256,1,1) block=(512,1,1) lds={LDS_BYTES}")
print('.amdgcn_target "amdgcn-amd-amdhsa--gfx950"')
print(".text\n.globl standalone__weight_only_int_gptq__prompt_kernel\n.p2align 8")
print(".type standalone__weight_only_int_gptq__prompt_kernel,@function")
lab("standalone__weight_only_int_gptq__prompt_kernel")
e("s_cmp_ge_u32 s2, 256")
e("s_cbranch_scc1 L_exit")
e(f"s_load_dwordx4 s[{sK}:{sK+3}], s[0:1], 0")
e(f"s_load_dwordx4 s[{sK+4}:{sK+7}], s[0:1], 16")
e(f"s_load_dwordx2 s[{sK+8}:{sK+9}], s[0:1], 40")
e(f"v_lshrrev_b32 v{vLane}, 6, v0")
e(f"v_and_b32 v{vL31}, 31, v0")
e(f"v_readfirstlane_b32 s{sWave}, v{vLane}")
e(f"v_and_b32 v{vLane}, 63, v0")
e(f"v_lshrrev_b32 v{vH}, 5, v{vLane}")
e(f"s_lshr_b32 s{sMt}, s2, 4")
e(f"s_and_b32 s{sNt}, s2, 15")
e(f"s_mov_b32 s{sSel0}, 0x05010400")
e(f"s_mov_b32 s{sSel1}, 0x07030602")
e(f"s_lshl_b32 s{sM0b}, s{sWave}, 11")
T = TMP
e(f"s_lshl_b32 s{sT0}, s{sMt}, 7")
e(f"s_lshl_b32 s{sT1}, s{sWave}, 4")
e(f"s_add_u32 s{sT0}, s{sT0}, s{sT1}")
for j in range(2):
    e(f"v_lshrrev_b32 v{T[0]}, 3, v{vLane}")
    e(f"v_add_u32 v{T[0]}, s{sT0}, v{T[0]}")
    if j: e(f"v_add_u32 v{T[0]}, 8, v{T[0]}")
    e(f"v_mul_u32_u24 v{T[0]}, {XROW}, v{T[0]}")
    e(f"v_lshrrev_b32 v{T[1]}, 4, v{vLane}")
    if j: e(f"v_add_u32 v{T[1]}, 4, v{T[1]}")
    e(f"v_and_b32 v{T[2]}, 7, v{vLane}")
    e(f"v_xor_b32 v{T[1]}, v{T[1]}, v{T[2]}")
    e(f"v_lshl_add_u32 v{vD[j]}, v{T[1]}, 4, v{T[0]}")
e(f"v_lshrrev_b32 v{T[0]}, 1, v{vL31}")
e(f"v_and_b32 v{T[0]}, 7, v{T[0]}")
e(f"v_lshlrev_b32 v{T[1]}, 7, v{vL31}")
e(f"v_mul_u32_u24 v{T[3]}, 5, v{vH}")
e(f"s_lshl_b32 s{sT1}, s{sWave}, 12")
for c in range(8):
    e(f"v_add_u32 v{T[2]}, {c}, v{T[3]}")
    e(f"v_lshrrev_b32 v{T[4]}, 3, v{T[2]}")
    e(f"v_and_b32 v{T[2]}, 7, v{T[2]}")
    e(f"v_xor_b32 v{T[2]}, v{T[2]}, v{T[0]}")
    e(f"v_lshl_add_u32 v{T[2]}, v{T[2]}, 4, v{T[1]}")
    e(f"v_lshl_add_u32 v{R[c]}, v{T[4]}, 14, v{T[2]}")
    e(f"v_add_u32 v{R8[c]}, s{sT1}, v{R[c]}")
e(f"v_add_u32 v{T[2]}, 6, v{vH}")
e(f"v_xor_b32 v{T[2]}, v{T[2]}, v{T[0]}")
e(f"v_lshl_add_u32 v{T[2]}, v{T[2]}, 4, v{T[1]}")
e(f"v_add_u32 v{vRt}, {8*STAGE_B}, v{T[2]}")
e(f"v_add_u32 v{vRt8}, s{sT1}, v{vRt}")
e(f"s_mul_i32 s{sT0}, s{sNt}, 288")
e(f"s_lshl_b32 s{sT1}, s{sWave}, 5")
e(f"s_add_u32 s{sT0}, s{sT0}, s{sT1}")
e(f"v_add_u32 v{T[0]}, s{sT0}, v{vL31}")
e(f"v_lshlrev_b32 v{vWt}, 2, v{T[0]}")
e(f"v_mul_u32_u24 v{T[1]}, {4*QROW}, v{vH}")
e(f"v_add_u32 v{vW}, v{vWt}, v{T[1]}")
e(f"s_lshl_b32 s{sT1}, s{sWave}, 7")
e(f"s_sub_u32 s{sT1}, 1024, s{sT1}")
e(f"v_add_u32 v{vWt8}, s{sT1}, v{vWt}")
e(f"v_add_u32 v{vW8}, s{sT1}, v{vW}")
e(f"v_mul_u32_u24 v{vHsh}, 24, v{vH}")
e(f"v_subrev_u32 v{vHm}, 1, v{vH}")
e(f"s_lshl_b32 s{sT1}, s{sMt}, 7")
e(f"v_add_u32 v{T[0]}, s{sT1}, v{vL31}")
e(f"v_mul_u32_u24 v{T[0]}, 9, v{T[0]}")
e(f"v_lshlrev_b32 v{T[0]}, 10, v{T[0]}")
e(f"v_lshlrev_b32 v{T[1]}, 3, v{vH}")
e(f"v_add_u32 v{T[1]}, s{sT0}, v{T[1]}")
e(f"v_lshl_add_u32 v{vO}, v{T[1]}, 1, v{T[0]}")
e(f"s_lshl_b32 s{sT0}, s{sWave}, 6")
e("s_waitcnt lgkmcnt(0)")
for srd, ptr, nb in ((sX, sK, M*XROW), (sQ, sK+2, 57*QROW), (sS, sK+4, N*2), (sZ, sK+6, N*2), (sOut, sK+8, M*OROW)):
    e(f"s_mov_b32 s{srd}, s{ptr}")
    e(f"s_and_b32 s{srd+1}, s{ptr+1}, 0xffff")
    e(f"s_mov_b32 s{srd+2}, {nb}")
    e(f"s_mov_b32 s{srd+3}, 0x00020000")
e(f"s_cmp_ge_u32 s{sWave}, 4")
e("s_cbranch_scc1 L_bwave")
wave_body(True)
lab("L_bwave")
wave_body(False)
lab("L_exit")
e("s_endpgm")
print("\n".join(out))
nv = (NVGPR + 7) // 8 * 8
print(f""".section .rodata,"a"
.p2align 6
.amdhsa_kernel standalone__weight_only_int_gptq__prompt_kernel
  .amdhsa_next_free_vgpr {nv}
  .amdhsa_next_free_sgpr 64
  .amdhsa_accum_offset {nv}
  .amdhsa_group_segment_fixed_size 0
  .amdhsa_kernarg_size 64
  .amdhsa_user_sgpr_count 2
  .amdhsa_user_sgpr_kernarg_segment_ptr 1
  .amdhsa_system_sgpr_workgroup_id_x 1
  .amdhsa_float_denorm_mode_32 3
.end_amdhsa_kernel""")
sys.stderr.write(f"NVGPR={NVGPR}\n")
```

```python
import sys

M, K, N = 2048, 570, 4608
XROW = 1140
QROW = N * 4
OROW = N * 2
NSTAGE = 8
STAGE_B = 20480
LDS_BYTES = NSTAGE * STAGE_B

class Alloc:
    def __init__(self, start): self.n = start
    def get(self, cnt=1, align=1):
        self.n = (self.n + align - 1) // align * align
        r = self.n; self.n += cnt; return r

va = Alloc(1)
vLane = va.get(); vL31 = va.get(); vH = va.get()
vD = [va.get(), va.get(), va.get()]
vW = va.get(); vW8 = va.get(); vWt = va.get(); vWt8 = va.get()
vO = va.get(); vHsh = va.get(); vHm = va.get()
vRt = va.get(); vRt8 = va.get()
R = [va.get() for _ in range(5)]
R8 = [va.get() for _ in range(5)]
LUT = [[va.get() for _ in range(4)] for _ in range(2)]
TMP = [va.get() for _ in range(12)]
WREG = [[va.get() for _ in range(9)] for _ in range(2)]
XF = [[va.get(4, 4) for _ in range(5)] for _ in range(2)]
WF = [[va.get(4, 4) for _ in range(2)] for _ in range(2)]
ACC = [va.get(16, 4) for _ in range(5)]
NVGPR = va.n

sX, sQ, sS, sZ, sOut = 4, 8, 12, 16, 20
sWave, sMt, sNt, sM0b = 24, 25, 26, 27
sSel0, sSel1 = 28, 29
sT0, sT1, sT2, sT3 = 30, 31, 32, 33
sK = 36

out = []
def e(s): out.append("    " + s)
def lab(s): out.append(s + ":")

class VM:
    def __init__(self): self.q = []; self.done = 0
    def issue(self, tag): self.q.append(tag)
    def outstanding(self): return len(self.q) - self.done
    def wait(self, tag):
        idx = max(i for i, t in enumerate(self.q) if t == tag)
        if idx < self.done: return
        n = len(self.q) - 1 - idx
        e(f"s_waitcnt vmcnt({n})")
        self.done = idx + 1

KS = []
for P in range(7):
    for t in range(5):
        KS.append((P, t, 10 * P + t, 10 * P + 5 + t))
KS.append((7, 0, 70, 71))
NKS = len(KS)
def stage_needed(ks):
    return max(KS[ks][2], KS[ks][3]) // 8

def gen_lut(cb, vz, vs):
    t = TMP
    e(f"v_lshlrev_b32 v{vz}, 16, v{vz}")
    e(f"v_lshlrev_b32 v{vs}, 16, v{vs}")
    lit = ["0", "1.0", "2.0", "0x40400000", "4.0", "0x40a00000", "0x40c00000", "0x40e00000"]
    W = [t[8], t[9], t[10], t[11]]
    for p in range(4):
        e(f"v_sub_f32 v{t[0]}, {lit[2*p]}, v{vz}")
        e(f"v_sub_f32 v{t[1]}, {lit[2*p+1]}, v{vz}")
        e(f"v_cvt_pk_bf16_f32 v{t[2]}, v{t[0]}, v{t[1]}")
        e(f"v_lshlrev_b32 v{t[3]}, 16, v{t[2]}")
        e(f"v_and_b32 v{t[4]}, 0xffff0000, v{t[2]}")
        e(f"v_mul_f32 v{t[3]}, v{t[3]}, v{vs}")
        e(f"v_mul_f32 v{t[4]}, v{t[4]}, v{vs}")
        e(f"v_cvt_pk_bf16_f32 v{W[p]}, v{t[3]}, v{t[4]}")
    e(f"s_mov_b32 s{sT3}, 0x06040200")
    e(f"s_mov_b32 s{sT1}, 0x07050301")
    L = LUT[cb]
    e(f"v_perm_b32 v{L[0]}, v{W[1]}, v{W[0]}, s{sT3}")
    e(f"v_perm_b32 v{L[1]}, v{W[3]}, v{W[2]}, s{sT3}")
    e(f"v_perm_b32 v{L[2]}, v{W[1]}, v{W[0]}, s{sT1}")
    e(f"v_perm_b32 v{L[3]}, v{W[3]}, v{W[2]}, s{sT1}")

def dequant(cb, ks, buf):
    P, t, _, _ = KS[ks]
    L = LUT[cb]; dst = WF[buf][cb]; T = TMP[6 * cb: 6 * cb + 6]
    ins = []
    if P < 7:
        words = [WREG[cb][4 * (P & 1) + i] for i in range(4)]
        pairs = [4 * t + j for j in range(4)]
        pw = [(words[p // 5], 6 * (p % 5)) for p in pairs]
    else:
        wt = T[5]
        ins.append(f"v_lshrrev_b32 v{wt}, v{vHsh}, v{WREG[cb][8]}")
        pw = [(wt, 6 * j) for j in range(4)]
    for h in range(2):
        (wa, oa), (wb, ob) = pw[2 * h], pw[2 * h + 1]
        ins.append(f"v_bfe_u32 v{T[0]}, v{wa}, {oa}, 6")
        ins.append(f"v_bfe_u32 v{T[1]}, v{wb}, {ob}, 6")
        ins.append(f"v_lshl_or_b32 v{T[0]}, v{T[1]}, 16, v{T[0]}")
        ins.append(f"v_lshl_or_b32 v{T[1]}, v{T[0]}, 5, v{T[0]}")
        ins.append(f"v_and_b32 v{T[2]}, 0x07070707, v{T[1]}")
        ins.append(f"v_perm_b32 v{T[3]}, v{L[1]}, v{L[0]}, v{T[2]}")
        ins.append(f"v_perm_b32 v{T[4]}, v{L[3]}, v{L[2]}, v{T[2]}")
        ins.append(f"v_perm_b32 v{dst + 2*h}, v{T[4]}, v{T[3]}, s{sSel0}")
        ins.append(f"v_perm_b32 v{dst + 2*h + 1}, v{T[4]}, v{T[3]}, s{sSel1}")
    if P == 7:
        for d in (1, 2, 3):
            ins.append(f"v_and_b32 v{dst + d}, v{vHm}, v{dst + d}")
    return ins

def wave_body(awave):
    tag = "A" if awave else "B"
    ncb = 2 if awave else 1
    nx = 5 if awave else 4
    nblk = 5 if awave else 4
    nd = 3 if awave else 2
    sP = 46; sQo = 47; sXo = 48; sLd = 49
    def words(P_parity, soff_reg):
        for cb in range(ncb):
            for i in range(4):
                e(f"s_add_u32 s{sT2}, s{soff_reg}, {i * QROW}")
                e(f"buffer_load_dword v{WREG[cb][4*P_parity+i]}, v{vW8 if cb else vW}, s[{sQ}:{sQ+3}], s{sT2} offen")
    def dma():
        for j in range(nd):
            e(f"s_add_u32 m0, s{sLd}, {j * 8192}")
            e("s_nop 0")
            e(f"buffer_load_dwordx4 v{vD[j]}, s[{sX}:{sX+3}], s{sXo} offen lds")
    def adv_dma():
        e(f"s_add_u32 s{sXo}, s{sXo}, 160"); e(f"s_min_u32 s{sXo}, s{sXo}, {7*160}")
        e(f"s_add_u32 s{sLd}, s{sLd}, {STAGE_B}"); e(f"s_min_u32 s{sLd}, s{sLd}, s{sT0}")
    def xreads(t, buf, tail=False):
        for r in range(4):
            e(f"ds_read_b128 v[{XF[buf][r]}:{XF[buf][r]+3}], v{vRt if tail else R[t]} offset:{r*5120}")
        if awave:
            e(f"ds_read_b128 v[{XF[buf][4]}:{XF[buf][4]+3}], v{vRt8 if tail else R8[t]}")
    def mfmas(buf, V, first=False):
        mf = []
        for bk in range(nblk):
            cb = 1 if bk == 4 else 0
            x = XF[buf][bk]; w = WF[buf][cb]; a = ACC[bk]
            c = "0" if first else f"v[{a}:{a+15}]"
            mf.append(f"v_mfma_f32_32x32x16_bf16 v[{a}:{a+15}], v[{w}:{w+3}], v[{x}:{x+3}], {c}")
        per = -(-len(V) // len(mf)) if V else 0
        for m in mf:
            e(m)
            for i in V[:per]: e(i)
            V = V[per:]
    nwords = 4 * ncb
    for bk in range(nblk):
        for q in range(16): e(f"v_mov_b32 v{ACC[bk]+q}, 0")
    e(f"s_add_u32 s{sT0}, s{sM0b}, {7*STAGE_B}")
    zs = [(TMP[6], TMP[7]), (WF[1][0], WF[1][1])]
    for cb in range(ncb):
        vo = vWt8 if cb else vWt
        e(f"v_lshrrev_b32 v{TMP[0]}, 1, v{vo}")
        e(f"buffer_load_ushort v{zs[cb][0]}, v{TMP[0]}, s[{sZ}:{sZ+3}], 0 offen")
        e(f"buffer_load_ushort v{zs[cb][1]}, v{TMP[0]}, s[{sS}:{sS+3}], 0 offen")
    e(f"s_mov_b32 s{sQo}, 0"); e(f"s_mov_b32 s{sXo}, 0"); e(f"s_mov_b32 s{sLd}, s{sM0b}")
    words(0, sQo)
    dma(); adv_dma()
    for cb in range(ncb):
        e(f"s_mov_b32 s{sT2}, {56*QROW}")
        e(f"buffer_load_dword v{WREG[cb][8]}, v{vWt8 if cb else vWt}, s[{sQ}:{sQ+3}], s{sT2} offen")
    dma(); adv_dma()
    e(f"s_waitcnt vmcnt({nwords + 2*nd + ncb})")
    lut_regs = (sT1, sT3)
    for cb in range(ncb): gen_lut(cb, zs[cb][0], zs[cb][1])
    e(f"s_waitcnt vmcnt({2*nd + ncb})")
    for cb in range(ncb):
        for i in dequant(cb, 0, 0): e(i)
    e(f"s_waitcnt vmcnt({nd + ncb})")
    e("s_barrier")
    xreads(0, 0)
    e(f"s_mov_b32 s{sP}, 0")
    lab(f"L_loop{tag}")
    for half in range(2):
        for t in range(5):
            ks = 5 * half + t
            buf = ks & 1
            if t == 0:
                e(f"s_add_u32 s{sQo}, s{sQo}, {8*QROW}")
                words((half + 1) & 1, sQo)
                dma(); adv_dma()
            V = []
            if t < 4:
                xreads(t + 1, buf ^ 1)
                for cb in range(ncb): V += dequant(cb, ks + 1, buf ^ 1)
            else:
                e(f"s_waitcnt vmcnt({nd})")
                e("s_barrier")
                for c in range(5):
                    e(f"v_add_u32 v{R[c]}, {STAGE_B}, v{R[c]}")
                    if awave: e(f"v_add_u32 v{R8[c]}, {STAGE_B}, v{R8[c]}")
                xreads(0, buf ^ 1)
                for cb in range(ncb): V += dequant(cb, 5 * (half + 1), buf ^ 1)
            e(f"s_waitcnt lgkmcnt({nx})")
            mfmas(buf, V, first=False)
        e(f"s_add_u32 s{sP}, s{sP}, 1")
        e(f"s_cmp_eq_u32 s{sP}, 7")
        e(f"s_cbranch_scc1 L_done{tag}{half}")
    e(f"s_branch L_loop{tag}")
    lab(f"L_done{tag}1")
    e("s_endpgm")
    lab(f"L_done{tag}0")
    buf = 1
    e("s_waitcnt lgkmcnt(0)")
    xreads(0, buf, tail=True)
    for cb in range(ncb):
        for i in dequant(cb, NKS - 1, buf): e(i)
    e("s_waitcnt lgkmcnt(0)")
    e("s_nop 1")
    mfmas(buf, [])
    e("s_nop 15"); e("s_nop 7")
    sets = [XF[0][0], XF[0][2], XF[1][0], XF[1][2]]
    for b in range(nblk):
        a = ACC[b]; T = sets[b % 4]
        for g in range(4):
            e(f"v_cvt_pk_bf16_f32 v{T+2*g}, v{a+4*g}, v{a+4*g+1}")
            e(f"v_cvt_pk_bf16_f32 v{T+2*g+1}, v{a+4*g+2}, v{a+4*g+3}")
        for gp in range(2):
            e(f"v_permlane32_swap_b32 v{T+4*gp}, v{T+4*gp+2}")
            e(f"v_permlane32_swap_b32 v{T+4*gp+1}, v{T+4*gp+3}")
        if b == 4:
            e(f"s_mul_i32 s{sT3}, s{sWave}, {32*OROW - 64}")
            e(f"s_add_u32 s{sT3}, s{sT3}, {8*64}")
            so = sT3
        else:
            e(f"s_mov_b32 s{sT2}, {b*32*OROW}")
            so = sT2
        for gp in range(2):
            e(f"buffer_store_dwordx4 v[{T+4*gp}:{T+4*gp+3}], v{vO}, s[{sOut}:{sOut+3}], s{so} offen offset:{32*gp}")
    e("s_endpgm")

hdr = open("standalone__weight_only_int_gptq__prompt.s.ref").read().split("; @launch")[0]
print(hdr.rstrip())
print(f"; @launch grid=(256,1,1) block=(512,1,1) lds={LDS_BYTES}")
print('.amdgcn_target "amdgcn-amd-amdhsa--gfx950"')
print(".text\n.globl standalone__weight_only_int_gptq__prompt_kernel\n.p2align 8")
print(".type standalone__weight_only_int_gptq__prompt_kernel,@function")
lab("standalone__weight_only_int_gptq__prompt_kernel")
e("s_cmp_ge_u32 s2, 256")
e("s_cbranch_scc1 L_exit")
e(f"s_load_dwordx4 s[{sK}:{sK+3}], s[0:1], 0")
e(f"s_load_dwordx4 s[{sK+4}:{sK+7}], s[0:1], 16")
e(f"s_load_dwordx2 s[{sK+8}:{sK+9}], s[0:1], 40")
e(f"v_lshrrev_b32 v{vLane}, 6, v0")
e(f"v_and_b32 v{vL31}, 31, v0")
e(f"v_readfirstlane_b32 s{sWave}, v{vLane}")
e(f"v_and_b32 v{vLane}, 63, v0")
e(f"v_lshrrev_b32 v{vH}, 5, v{vLane}")
e(f"s_lshr_b32 s{sMt}, s2, 4")
e(f"s_and_b32 s{sNt}, s2, 15")
e(f"s_mov_b32 s{sSel0}, 0x05010400")
e(f"s_mov_b32 s{sSel1}, 0x07030602")
T = TMP
e(f"s_lshl_b32 s{sT0}, s{sMt}, 7")
e(f"s_lshl_b32 s{sT1}, s{sWave}, 6")
for j in range(3):
    e(f"v_add_u32 v{T[0]}, s{sT1}, v{vLane}")
    if j: e(f"v_add_u32 v{T[0]}, {512*j}, v{T[0]}")
    e(f"v_mul_u32_u24 v{T[1]}, 6554, v{T[0]}")
    e(f"v_lshrrev_b32 v{T[1]}, 16, v{T[1]}")
    e(f"v_mul_u32_u24 v{T[2]}, 10, v{T[1]}")
    e(f"v_sub_u32 v{T[2]}, v{T[0]}, v{T[2]}")
    e(f"v_bfe_u32 v{T[3]}, v{T[1]}, 3, 1")
    e(f"v_sub_u32 v{T[2]}, v{T[2]}, v{T[3]}")
    e(f"v_add_u32 v{T[3]}, 10, v{T[2]}")
    e(f"v_min_u32 v{T[2]}, v{T[2]}, v{T[3]}")
    e(f"v_add_u32 v{T[1]}, s{sT0}, v{T[1]}")
    e(f"v_mul_u32_u24 v{T[1]}, {XROW}, v{T[1]}")
    e(f"v_lshl_add_u32 v{vD[j]}, v{T[2]}, 4, v{T[1]}")
e(f"s_lshl_b32 s{sM0b}, s{sWave}, 10")
e(f"v_bfe_u32 v{T[0]}, v{vL31}, 3, 1")
e(f"v_mul_u32_u24 v{T[1]}, 160, v{vL31}")
e(f"v_mul_u32_u24 v{T[3]}, 5, v{vH}")
e(f"v_add_u32 v{T[3]}, v{T[3]}, v{T[0]}")
e(f"s_mul_i32 s{sT1}, s{sWave}, 5120")
for c in range(5):
    e(f"v_add_u32 v{T[2]}, {c}, v{T[3]}")
    e(f"v_subrev_u32 v{T[4]}, 10, v{T[2]}")
    e(f"v_min_u32 v{T[2]}, v{T[2]}, v{T[4]}")
    e(f"v_lshl_add_u32 v{R[c]}, v{T[2]}, 4, v{T[1]}")
    e(f"v_add_u32 v{R8[c]}, s{sT1}, v{R[c]}")
e(f"v_add_u32 v{T[2]}, v{vH}, v{T[0]}")
e(f"v_lshl_add_u32 v{T[2]}, v{T[2]}, 4, v{T[1]}")
e(f"v_add_u32 v{vRt}, {7*STAGE_B}, v{T[2]}")
e(f"v_add_u32 v{vRt8}, s{sT1}, v{vRt}")
e(f"s_mul_i32 s{sT0}, s{sNt}, 288")
e(f"s_lshl_b32 s{sT1}, s{sWave}, 5")
e(f"s_add_u32 s{sT0}, s{sT0}, s{sT1}")
e(f"v_add_u32 v{T[0]}, s{sT0}, v{vL31}")
e(f"v_lshlrev_b32 v{vWt}, 2, v{T[0]}")
e(f"v_mul_u32_u24 v{T[1]}, {4*QROW}, v{vH}")
e(f"v_add_u32 v{vW}, v{vWt}, v{T[1]}")
e(f"s_lshl_b32 s{sT1}, s{sWave}, 7")
e(f"s_sub_u32 s{sT1}, 1024, s{sT1}")
e(f"v_add_u32 v{vWt8}, s{sT1}, v{vWt}")
e(f"v_add_u32 v{vW8}, s{sT1}, v{vW}")
e(f"v_mul_u32_u24 v{vHsh}, 24, v{vH}")
e(f"v_subrev_u32 v{vHm}, 1, v{vH}")
e(f"s_lshl_b32 s{sT1}, s{sMt}, 7")
e(f"v_add_u32 v{T[0]}, s{sT1}, v{vL31}")
e(f"v_mul_u32_u24 v{T[0]}, 9, v{T[0]}")
e(f"v_lshlrev_b32 v{T[0]}, 10, v{T[0]}")
e(f"v_lshlrev_b32 v{T[1]}, 3, v{vH}")
e(f"v_add_u32 v{T[1]}, s{sT0}, v{T[1]}")
e(f"v_lshl_add_u32 v{vO}, v{T[1]}, 1, v{T[0]}")
e("s_waitcnt lgkmcnt(0)")
for srd, ptr, nb in ((sX, sK, M*XROW), (sQ, sK+2, 57*QROW), (sS, sK+4, N*2), (sZ, sK+6, N*2), (sOut, sK+8, M*OROW)):
    e(f"s_mov_b32 s{srd}, s{ptr}")
    e(f"s_and_b32 s{srd+1}, s{ptr+1}, 0xffff")
    e(f"s_mov_b32 s{srd+2}, {nb}")
    e(f"s_mov_b32 s{srd+3}, 0x00020000")
e(f"s_cmp_ge_u32 s{sWave}, 4")
e("s_cbranch_scc1 L_bwave")
wave_body(True)
lab("L_bwave")
wave_body(False)
lab("L_exit")
e("s_endpgm")
print("\n".join(out))
nv = (NVGPR + 7) // 8 * 8
print(f""".section .rodata,"a"
.p2align 6
.amdhsa_kernel standalone__weight_only_int_gptq__prompt_kernel
  .amdhsa_next_free_vgpr {nv}
  .amdhsa_next_free_sgpr 64
  .amdhsa_accum_offset {nv}
  .amdhsa_group_segment_fixed_size 0
  .amdhsa_kernarg_size 64
  .amdhsa_user_sgpr_count 2
  .amdhsa_user_sgpr_kernarg_segment_ptr 1
  .amdhsa_system_sgpr_workgroup_id_x 1
  .amdhsa_float_denorm_mode_32 3
.end_amdhsa_kernel""")
sys.stderr.write(f"NVGPR={NVGPR}\n")
```
